```python
import torch

def _softmax(x, axis=-1):
    return torch.softmax(x, dim=axis)
def _gelu(x):
    return torch.nn.functional.gelu(x, approximate="tanh")
def _silu(x):
    return torch.nn.functional.silu(x)
def _sigmoid(x):
    return torch.sigmoid(x)
def _layernorm(x, axis=-1, eps=1e-5):
    m = x.mean(dim=axis, keepdim=True)
    v = x.var(dim=axis, keepdim=True, unbiased=False)
    return (x - m) / torch.sqrt(v + eps)
def _scatter_add(tgt, idx, src, axis=0):
    return tgt.clone().index_add_(axis, idx, src)
def _segment_sum(src, seg, n):
    out = torch.zeros((n,) + src.shape[1:], dtype=src.dtype)
    return out.index_add_(0, seg, src)
def _pad(x, pw):
    flat = tuple(v for pair in reversed(pw) for v in pair)
    return torch.nn.functional.pad(x, flat)

kernel_name = 'recurrent_scan__sliding_local_dilated__glu_gated_geglu__prompt'

def setup_inputs():

    _w = (lambda a: (lambda t: t.to(torch.bfloat16) if t.is_floating_point() else t)(torch.as_tensor(a)))
    def _A_setup():
        B, S, D = 1, 2048, 640
        return {
            "x": _w((lambda *s: torch.randn(*s, dtype=torch.bfloat16) * 0.05)(B, S, D)),
            "wqkv": _w((lambda *s: torch.randn(*s, dtype=torch.bfloat16) * 0.2)(D, 3 * D)),
            "wo": _w((lambda *s: torch.randn(*s, dtype=torch.bfloat16) * 0.2)(D, D)),
        }
    _A_in = _A_setup()

    def _B_setup():
        B, S, Dm, Df = 1, 2048, 640, 1728
        return {
            "x": _w((lambda *s: torch.randn(*s, dtype=torch.bfloat16) * 0.05)(B, S, Dm)),
            "w_gate": _w((lambda *s: torch.randn(*s, dtype=torch.bfloat16) * 0.1)(Dm, Df) * (Dm ** -0.5)),
            "w_up": _w((lambda *s: torch.randn(*s, dtype=torch.bfloat16) * 0.1)(Dm, Df) * (Dm ** -0.5)),
            "w_down": _w((lambda *s: torch.randn(*s, dtype=torch.bfloat16) * 0.1)(Df, Dm) * (Df ** -0.5)),
        }
    _B_in = _B_setup()

    return {
        "A_x": _A_in["x"],
        "A_wqkv": _A_in["wqkv"],
        "A_wo": _A_in["wo"],
        "B_x": _B_in["x"],
        "B_w_gate": _B_in["w_gate"],
        "B_w_up": _B_in["w_up"],
        "B_w_down": _B_in["w_down"],
    }

def reference(A_x, A_wqkv, A_wo, B_x, B_w_gate, B_w_up, B_w_down):
    def _A_ref(x, wqkv, wo):
        B, S, D = x.shape
        H = 32; Dh = D // H
        W, dil = 8, 2
        qkv = (lambda x, *d: x.permute(*d))((x @ wqkv).reshape(B, S, 3, H, Dh), 2, 0, 3, 1, 4)
        q, k, v = qkv[0], qkv[1], qkv[2]
        scale = Dh ** -0.5
        pos = torch.arange(S)
        off = torch.arange(W) * dil
        idx = pos[:, None] - off[None, :]
        mask = idx >= 0
        idx_c = torch.where(mask, idx, 0).reshape(-1)
        kg = k[:, :, idx_c, :].reshape(B, H, S, W, Dh)
        vg = v[:, :, idx_c, :].reshape(B, H, S, W, Dh)
        logits = torch.einsum("bhsd,bhswd->bhsw", q, kg) * scale
        logits = torch.where(mask[None, None, :, :], logits, -1e9)
        attn = _softmax(logits, axis=-1)
        o = torch.einsum("bhsw,bhswd->bhsd", attn, vg)
        return (lambda x, *d: x.permute(*d))(o, 0, 2, 1, 3).reshape(B, S, D) @ wo

    def _B_ref(x, w_gate, w_up, w_down):
        g = torch.einsum("bsd,df->bsf", x, w_gate)
        u = torch.einsum("bsd,df->bsf", x, w_up)
        h = _gelu(g) * u
        return torch.einsum("bsf,fd->bsd", h, w_down)

    x = A_x
    xn = _layernorm(x, axis=-1)
    s = _A_ref(xn, A_wqkv, A_wo)
    g = _silu(_B_ref(xn, B_w_gate, B_w_up, B_w_down))
    return x + s * g
```

```python
import re

TRANS = ('v_exp_f32','v_log_f32','v_rcp_f32','v_rsq_f32','v_sqrt_f32','v_sin_f32','v_cos_f32')
_reg = re.compile(r'^-?\|?([vas])(?:\[(\d+):(\d+)\]|(\d+))\|?$')

def regs_of(op):
    op = op.strip()
    if op in ('vcc',): return {('s','vcc')}
    if op == 'exec': return {('s','exec')}
    if op == 'm0': return {('s','m0')}
    m = _reg.match(op)
    if not m: return set()
    c = m.group(1)
    if m.group(4) is not None: return {(c, int(m.group(4)))}
    return {(c, i) for i in range(int(m.group(2)), int(m.group(3)) + 1)}

def parse(line):
    s = line.split(';')[0].strip()
    if not s or s.endswith(':') or s.startswith('.'): return None
    parts = s.split(None, 1)
    mn = parts[0]
    rest = parts[1] if len(parts) > 1 else ''
    ops = []; depth = 0; cur = ''
    for ch in rest:
        if ch == '[': depth += 1
        if ch == ']': depth -= 1
        if ch == ',' and depth == 0: ops.append(cur); cur = ''
        else: cur += ch
    if cur.strip(): ops.append(cur)
    ops = [o.strip() for o in ops]
    mods = ''
    if ops:
        t = ops[-1].split(None, 1)
        ops[-1] = t[0]
        mods = t[1] if len(t) > 1 else ''
    R = [regs_of(o) for o in ops]
    U = lambda xs: set().union(*xs) if xs else set()
    ex = {'mods': mods, 'ops': ops}
    if mn.startswith('v_mfma'):
        ex['C'] = R[3]; ex['AB'] = R[1] | R[2]
        ex['passes'] = 8 if '32x32' in mn else 4
        return mn, 'mfma', R[0], U(R[1:]), ex
    if mn.startswith('v_'):
        w = R[0]; r = U(R[1:])
        if 'permlane' in mn and 'swap' in mn: w = R[0] | R[1]; r = R[0] | R[1]
        if mn.startswith(('v_fmac', 'v_dot2c', 'v_pk_fmac')): r = r | R[0]
        if '_dpp' in mn or 'row_' in mods or 'quad_perm' in mods: ex['dpp'] = True; r = r | R[0]
        if mn.startswith(('v_add_co', 'v_sub_co', 'v_addc_co', 'v_subb_co')): w = R[0] | R[1]; r = U(R[2:])
        if mn.startswith('v_cmpx'): w = w | {('s', 'exec')}
        return mn, 'valu', w, r, ex
    if mn.startswith('ds_'):
        if mn.startswith(('ds_read', 'ds_bpermute', 'ds_permute', 'ds_swizzle')): return mn, 'ds', R[0], U(R[1:]), ex
        return mn, 'ds', set(), U(R), ex
    if mn.startswith(('buffer_', 'global_')):
        if 'lds' in mods.split() or 'load_lds' in mn:
            ex['ldsdma'] = True
            return mn, 'vmem', set(), U(R) | {('s', 'm0')}, ex
        if '_load' in mn: return mn, 'vmem', R[0], U(R[1:]), ex
        if '_store' in mn:
            if mn.startswith('buffer_'): ex['data'] = R[0]
            else: ex['data'] = R[1]
            ex['wide'] = mn.endswith(('x3', 'x4'))
            return mn, 'vmem', set(), U(R), ex
        if '_atomic' in mn:
            w = R[0] if 'sc0' in mods.split() else set()
            return mn, 'vmem', w, U(R), ex
        return mn, 'vmem', set(), U(R), ex
    if mn.startswith('s_'):
        if mn in ('s_nop',): ex['n'] = int(ops[0], 0) + 1; return mn, 'nop', set(), set(), ex
        if mn.startswith(('s_cmp', 's_cbranch', 's_branch', 's_waitcnt', 's_barrier', 's_endpgm', 's_setprio', 's_sleep', 's_bitcmp')):
            return mn, 'salu', set(), U(R), ex
        w = R[0] if R else set()
        if 'saveexec' in mn: w = w | {('s', 'exec')}
        return mn, 'salu', w, U(R[1:]), ex
    raise ValueError('cannot parse: ' + line)

def need(p, c):
    pm, pk, pw, pr, pe = p; cm, ck, cw, cr, ce = c
    n = 0
    vw = {x for x in pw if x[0] in 'va'}; sw = {x for x in pw if x[0] == 's'}
    if pk == 'valu':
        if ck == 'mfma' and vw & cr: n = max(n, 2)
        if ck == 'mfma' and ('s', 'exec') in sw: n = max(n, 4)
        if ck == 'valu':
            if ce.get('dpp') and vw & cr: n = max(n, 2)
            if ce.get('dpp') and ('s', 'exec') in sw: n = max(n, 5)
            if 'permlane' in cm and vw & cr: n = max(n, 2)
            if cm.startswith(('v_readlane', 'v_readfirstlane')) and vw & cr: n = max(n, 1)
            if pm.startswith(TRANS) and vw & cr: n = max(n, 1)
            if sw & cr: n = max(n, 4 if cm.startswith(('v_readlane', 'v_writelane')) else 2)
            if pm.startswith(('v_dot2',)) and vw & (cr | cw) and not (cm == pm): n = max(n, 3)
            if pm.startswith(('v_dot2',)) and cm == pm and vw & (regs_of(ce['ops'][1]) | regs_of(ce['ops'][2])): n = max(n, 3)
        if ck == 'vmem' and sw & cr: n = max(n, 5)
        if ck == 'salu' and sw & cr: n = max(n, 1)
        if ck in ('vmem', 'ds') and pm.startswith('v_dot2') and vw & cr: n = max(n, 3)
    if pk == 'salu':
        if ('s', 'm0') in sw and ce.get('ldsdma'): n = max(n, 1)
    if pk == 'mfma':
        P = pe['passes']; big = {4: 8, 8: 12}[P]
        if ck == 'mfma':
            if vw & ce['AB']: n = max(n, big)
            if vw & ce['C'] and not (pw == ce['C'] and ce['passes'] == P): n = max(n, {4: 6, 8: 10}[P])
            if vw & cw and not (vw & ce['C']): n = max(n, big)
        elif ck in ('valu', 'vmem', 'ds'):
            if vw & (cr | cw): n = max(n, big)
            if ck == 'valu' and pe['C'] & cw: n = max(n, {4: 3, 8: 7}[P])
    if pk == 'vmem' and pe.get('wide') and pe['data'] & cw:
        n = max(n, 2 if ck in ('valu', 'mfma') else 1)
    return n

def fix_hazards(lines):
    out = []; hist = []
    for ln in lines:
        for l in ln.split('\n'):
            p = parse(l)
            if p is None:
                out.append(l); continue
            req = 0
            for q, d in hist:
                req = max(req, need(q, p) - d)
            if req > 0:
                out.append(f's_nop {req - 1}')
                for h in hist: h[1] += req
            out.append(l)
            adv = p[4]['n'] if p[1] == 'nop' else 1
            for h in hist: h[1] += adv
            hist = [h for h in hist if h[1] < 13]
            if p[1] != 'nop': hist.append([p, 0])
    return out

class Ctr:
    def __init__(self, asm, name, maxv): self.a = asm; self.name = name; self.maxv = maxv; self.q = []
    def issue(self, tag): self.q.append(tag)
    def wait(self, tags, force=False):
        if not isinstance(tags, (list, set)): tags = [tags]
        last = -1
        for i, t in enumerate(self.q):
            if t in tags: last = i
        if last < 0: return
        rem = len(self.q) - 1 - last
        if rem > self.maxv: rem = self.maxv
        self.a(f's_waitcnt {self.name}({rem})')
        self.q = self.q[len(self.q) - rem:] if rem else []
    def wait_all(self):
        self.a(f's_waitcnt {self.name}(0)'); self.q = []
    def reset(self, q=None): self.q = list(q or [])

class Asm:
    def __init__(self):
        self.L = []
        self.vm = Ctr(self, 'vmcnt', 63); self.lg = Ctr(self, 'lgkmcnt', 15)
    def __call__(self, s):
        self.L.extend(s.split('\n'))
    def vmem(self, s, tag=None): self(s); self.vm.issue(tag)
    def ds(self, s, tag=None): self(s); self.lg.issue(tag)
    def text(self): return '\n'.join(fix_hazards(self.L)) + '\n'

def vr(b, n=1): return f'v{b}' if n == 1 else f'v[{b}:{b+n-1}]'
def sr(b, n=1): return f's{b}' if n == 1 else f's[{b}:{b+n-1}]'
import struct
def f2u(x): return struct.unpack('<I', struct.pack('<f', x))[0]
```

```python
import sys, math
from asmlib import *
NAME='recurrent_scan__sliding_local_dilated__glu_gated_geglu__prompt'
STATS=0x0; CSP=0x8000; W2P=0x100000; ACT=0x400000; WSZ=0x1000000; STAMP=0x1000000
CSJ=84*256
XB=2048*640*2
sX=8; sWa=12; sWb=16; sWS=20; sST=24; sOUT=28
pX,pQKV,pWO,pG,pU,pD,pOUT,pDBG,pWS=36,38,40,44,46,48,50,52,54
sW=56
LW=0; LX=98304; LCS=139264; LST=LCS+1536; LM=LST+2560; LR=LM+640; LEND=LR+640
KG=2*math.sqrt(2/math.pi)*math.log2(math.e)
OOB=0x40000000

def srd(a,s,p,size):
    a(f's_mov_b32 s{s}, s{p}\ns_mov_b32 s{s+1}, s{p+1}\ns_mov_b32 s{s+2}, {size}\ns_mov_b32 s{s+3}, 0x20000')
def head(a,name,stamp=None):
    a(f'.globl {name}\n.p2align 8\n.type {name},@function\n{name}:')
    a(f's_cmp_ge_u32 s2, 256\ns_cbranch_scc1 {name}_end')
    a('s_load_dwordx16 s[36:51], s[0:1], 0\ns_load_dwordx4 s[52:55], s[0:1], 64')
    a(f'v_lshrrev_b32 v1, 6, v0\nv_and_b32 v0, 63, v0\nv_readfirstlane_b32 s{sW}, v1')
def desc(name,nv=256):
    return f'''.amdhsa_kernel {name}
  .amdhsa_next_free_vgpr {nv}
  .amdhsa_next_free_sgpr 102
  .amdhsa_accum_offset {nv}
  .amdhsa_group_segment_fixed_size 0
  .amdhsa_kernarg_size 80
  .amdhsa_user_sgpr_count 2
  .amdhsa_user_sgpr_kernarg_segment_ptr 1
  .amdhsa_system_sgpr_workgroup_id_x 1
.end_amdhsa_kernel'''
def sdiv(a,q,r,x,d,tmp=None):
    M=(1<<20)//d+1
    a(f's_mul_i32 s{q}, s{x}, {M}\ns_lshr_b32 s{q}, s{q}, 20')
    if r is not None: a(f's_mul_i32 s{r}, s{q}, {d}\ns_sub_u32 s{r}, s{x}, s{r}')
def red32(a,v,t):
    for n in (8,4,2,1): a(f'v_add_f32_dpp v{v}, v{v}, v{v} row_ror:{n} row_mask:0xf bank_mask:0xf')
    a(f'v_mov_b32 v{t}, v{v}\nv_permlane16_swap_b32 v{v}, v{t}\nv_add_f32 v{v}, v{v}, v{t}')

def job_stats_issue(a,sGW,vb):
    a(f'v_lshrrev_b32 v{vb}, 5, v0\ns_lshl_b32 s60, s{sGW}, 1\nv_add_u32 v{vb}, s60, v{vb}\nv_lshlrev_b32 v{vb+1}, 3, v{vb}')
    a(f'v_mul_u32_u24 v{vb}, 1280, v{vb}\nv_and_b32 v{vb+2}, 31, v0\nv_lshl_add_u32 v{vb}, v{vb+2}, 4, v{vb}')
    for i in range(12,16): a(f'v_mov_b32 v{vb+i}, 0')
    a.vmem(f'buffer_load_dwordx4 {vr(vb+4,4)}, v{vb}, {sr(sX,4)}, 0 offen','st')
    a.vmem(f'buffer_load_dwordx4 {vr(vb+8,4)}, v{vb}, {sr(sX,4)}, 0 offen offset:512','st')
    a('s_mov_b32 exec_lo, 0xffff\ns_mov_b32 exec_hi, 0xffff')
    a.vmem(f'buffer_load_dwordx4 {vr(vb+12,4)}, v{vb}, {sr(sX,4)}, 0 offen offset:1024','st')
    a('s_mov_b64 exec, -1')
def job_stats_finish(a,vb,fl=''):
    u=vb+16
    a.vm.wait('st')
    for i in range(12):
        a(f'v_lshlrev_b32 v{u+2*i}, 16, v{vb+4+i}\nv_and_b32 v{u+2*i+1}, 0xffff0000, v{vb+4+i}')
    s=vb+4; t=vb+5; q=vb+6
    a(f'v_add_f32 v{s}, v{u}, v{u+1}\nv_add_f32 v{t}, v{u+2}, v{u+3}')
    for i in range(4,24,2): a(f'v_add_f32 v{s}, v{s}, v{u+i}\nv_add_f32 v{t}, v{t}, v{u+i+1}')
    a(f'v_add_f32 v{s}, v{s}, v{t}')
    red32(a,s,t)
    a(f'v_mul_f32 v{s}, {f2u(1/640):#x}, v{s}')
    for i in range(24): a(f'v_sub_f32 v{u+i}, v{u+i}, v{s}')
    a(f'v_mul_f32 v{q}, v{u}, v{u}\nv_mul_f32 v{t}, v{u+1}, v{u+1}')
    for i in range(2,24,2):
        if i==16: a('s_mov_b32 exec_lo, 0xffff\ns_mov_b32 exec_hi, 0xffff')
        a(f'v_fmac_f32 v{q}, v{u+i}, v{u+i}\nv_fmac_f32 v{t}, v{u+i+1}, v{u+i+1}')
    a('s_mov_b64 exec, -1')
    a(f'v_add_f32 v{q}, v{q}, v{t}')
    red32(a,q,t)
    a(f'v_mov_b32 v{t}, {f2u(1e-5):#x}\nv_fmac_f32 v{t}, {f2u(1/640):#x}, v{q}\nv_rsq_f32 v{s+1}, v{t}')
    a('s_mov_b32 exec_lo, 1\ns_mov_b32 exec_hi, 1\ns_nop 0')
    a.vmem(f'buffer_store_dwordx2 {vr(s,2)}, v{vb+1}, {sr(sWS,4)}, 0 offen {fl}','sts')
    a('s_mov_b64 exec, -1')

def job_cs_issue(a,sU,vb,S):
    sdiv(a,60,61,sU,84)
    a(f's_cmp_lt_u32 s61, 57\ns_cselect_b32 s{S}, s{pG}, s{pU}\ns_cselect_b32 s{S+1}, s{pG+1}, s{pU+1}\ns_cselect_b32 s62, 30, 57')
    a(f's_cmp_lt_u32 s61, 30\ns_cselect_b32 s{S}, s{pQKV}, s{S}\ns_cselect_b32 s{S+1}, s{pQKV+1}, s{S+1}\ns_cselect_b32 s62, 0, s62')
    a(f's_mov_b32 s63, 3456\ns_cselect_b32 s63, 3840, s63\ns_mul_i32 s{S+2}, s63, 640\ns_mov_b32 s{S+3}, 0x20000')
    a(f's_sub_u32 s62, s61, s62\ns_lshl_b32 s62, s62, 7\ns_mul_i32 s64, s60, s63\ns_lshl_b32 s64, s64, 6\ns_add_u32 s64, s64, s62\ns_lshl_b32 s65, s63, 3')
    a(f's_mul_i32 s66, s60, {CSJ}\ns_lshl_b32 s67, s61, 8\ns_add_u32 s66, s66, s67\ns_add_u32 s66, s66, {CSP}')
    a(f'v_lshrrev_b32 v{vb}, 3, v0\nv_mul_lo_u32 v{vb}, v{vb}, s63\nv_and_b32 v{vb+1}, 7, v0\nv_lshl_add_u32 v{vb}, v{vb+1}, 4, v{vb}')
    for i in range(8):
        a.vmem(f'buffer_load_dwordx4 {vr(vb+12+4*i,4)}, v{vb}, {sr(S,4)}, s64 offen',('cs',i))
        if i<7: a('s_add_u32 s64, s64, s65')
def job_cs_finish(a,vb,fl=''):
    A=vb+4; t=vb+2
    for i in range(8):
        a.vm.wait(('cs',i))
        for r in range(4):
            d=vb+12+4*i+r
            if i==0: a(f'v_lshlrev_b32 v{A+2*r}, 16, v{d}\nv_and_b32 v{A+2*r+1}, 0xffff0000, v{d}')
            else: a(f'v_lshlrev_b32 v{t}, 16, v{d}\nv_and_b32 v{d}, 0xffff0000, v{d}\nv_add_f32 v{A+2*r}, v{A+2*r}, v{t}\nv_add_f32 v{A+2*r+1}, v{A+2*r+1}, v{d}')
    for r in range(4): a(f'v_permlane32_swap_b32 v{A+r}, v{A+4+r}')
    for r in range(4): a(f'v_add_f32 v{A+r}, v{A+r}, v{A+4+r}')
    for r in range(2): a(f'v_permlane16_swap_b32 v{A+r}, v{A+2+r}')
    for r in range(2): a(f'v_add_f32 v{A+r}, v{A+r}, v{A+2+r}')
    for r in range(2): a(f'v_add_f32_dpp v{A+r}, v{A+r}, v{A+r} row_ror:8 row_mask:0xf bank_mask:0xf')
    a(f'v_lshrrev_b32 v{t}, 4, v0\nv_lshlrev_b32 v{t}, 3, v{t}\nv_lshl_add_u32 v{t}, v{vb+1}, 5, v{t}')
    a('s_mov_b32 exec_lo, 0x00ff00ff\ns_mov_b32 exec_hi, 0x00ff00ff')
    a.vmem(f'buffer_store_dwordx2 {vr(A,2)}, v{t}, {sr(sWS,4)}, s66 offen {fl}','css')
    a('s_mov_b64 exec, -1')

def job_rp_issue(a,sU,vb,S,sL):
    sdiv(a,68,69,sU,10)
    a('s_sub_u32 s70, s68, 20\ns_max_i32 s70, s70, 0')
    sdiv(a,71,72,70,9)
    sdiv(a,73,74,72,3)
    a('s_mul_i32 s71, s71, 3\ns_add_u32 s71, s71, s74')
    a('s_lshr_b32 s72, s71, 1\ns_mul_i32 s72, s72, 192\ns_lshl_b32 s73, s73, 6\ns_add_u32 s72, s72, s73\ns_and_b32 s71, s71, 1\ns_lshl_b32 s71, s71, 5\ns_add_u32 s72, s72, s71')
    a('s_mul_i32 s73, s68, 40\ns_mul_i32 s74, s68, 160\ns_sub_u32 s74, s74, 2544')
    a('s_cmp_lt_u32 s68, 16\ns_cselect_b32 s73, s73, s74\ns_cselect_b32 s75, 4, 40')
    a(f's_cmp_lt_u32 s68, 20\ns_cselect_b32 s72, s73, s72\ns_cselect_b32 s75, s75, 4\ns_cselect_b32 s76, 20, 16')
    a(f's_cselect_b32 s{S}, s{pWO}, s{pD}\ns_cselect_b32 s{S+1}, s{pWO+1}, s{pD+1}\ns_mov_b32 s{S+2}, {1728*1280}\ns_cselect_b32 s{S+2}, {640*1280}, s{S+2}\ns_mov_b32 s{S+3}, 0x20000')
    a('s_mul_i32 s72, s72, 1280\ns_lshl_b32 s77, s69, 7\ns_add_u32 s72, s72, s77\ns_mul_i32 s75, s75, 1280')
    a(f'v_lshrrev_b32 v{vb}, 5, v0\nv_mul_lo_u32 v{vb}, v{vb}, s76\nv_bfe_u32 v{vb+1}, v0, 3, 2\nv_add_u32 v{vb}, v{vb}, v{vb+1}\nv_mul_u32_u24 v{vb}, 1280, v{vb}\nv_and_b32 v{vb+1}, 7, v0\nv_lshl_add_u32 v{vb}, v{vb+1}, 4, v{vb}')
    for g in range(4):
        a(f's_add_u32 m0, s{sL}, {g*1024}')
        a.vmem(f'buffer_load_dwordx4 v{vb}, {sr(S,4)}, s72 offen lds','rp')
        if g<3: a('s_add_u32 s72, s72, s75')
def job_rp_finish(a,vb,sL,fl=''):
    a(f'v_lshrrev_b32 v{vb}, 4, v0\nv_lshlrev_b32 v{vb}, 10, v{vb}\nv_bfe_u32 v{vb+1}, v0, 2, 2\nv_lshl_add_u32 v{vb}, v{vb+1}, 7, v{vb}\nv_and_b32 v{vb+1}, 3, v0\nv_lshl_add_u32 v{vb}, v{vb+1}, 3, v{vb}\nv_add_u32 v{vb}, s{sL}, v{vb}')
    a(f'v_lshlrev_b32 v{vb+1}, 4, v0')
    a.vm.wait('rp')
    for q in range(4):
        for h in range(2): a.ds(f'ds_read_b64_tr_b16 {vr(vb+4+4*q+2*h,2)}, v{vb} offset:{h*512+q*32}',('rp',q))
    for q in range(4):
        a(f's_lshl_b32 s70, s69, 2\ns_add_u32 s70, s70, {q}')
        sdiv(a,71,72,70,5)
        a(f's_mul_i32 s71, s71, 74\ns_add_u32 s71, s71, s68\ns_mul_i32 s71, s71, 5\ns_add_u32 s71, s71, s72\ns_lshl_b32 s71, s71, 10\ns_add_u32 s71, s71, {W2P}')
        a.lg.wait(('rp',q))
        a.vmem(f'buffer_store_dwordx4 {vr(vb+4+4*q,4)}, v{vb+1}, {sr(sWS,4)}, s71 offen {fl}','rps')

def k0():
    a=Asm(); n='prep_kernel'; head(a,n)
    a('s_waitcnt lgkmcnt(0)')
    srd(a,sX,pX,XB); srd(a,sWS,pWS,WSZ)
    a(f's_lshl_b32 s57, s2, 2\ns_add_u32 s57, s57, s{sW}\ns_lshl_b32 s58, s{sW}, 12')
    job_stats_issue(a,57,4); job_stats_finish(a,4)
    a('s_cmp_ge_u32 s57, 840\ns_cbranch_scc1 prep_kernel_end')
    job_cs_issue(a,57,48,sWa); job_cs_finish(a,48)
    a('s_cmp_ge_u32 s57, 740\ns_cbranch_scc1 prep_kernel_end')
    job_rp_issue(a,57,96,sWb,58); job_rp_finish(a,96,58)
    a(f'{n}_end:\ns_endpgm')
    return a.text()

sN0=57; sCG=58; sL0=59; sRB=80
sWL=81
def decode1(a):
    a('s_and_b32 s60, s2, 1\ns_bfe_u32 s61, s2, 0x20001\ns_lshr_b32 s62, s2, 3')
    a(f's_and_b32 s{sWL}, s{sW}, 3')
    a('s_cmp_lt_u32 s62, 14\ns_cbranch_scc1 L_roleA')
def decodeB(a):
    a('s_sub_u32 s62, s62, 14\ns_lshl_b32 s63, s60, 3\ns_lshl_b32 s64, s61, 1')
    a('s_and_b32 s65, s62, 7\ns_lshr_b32 s66, s62, 3\ns_add_u32 s66, s66, s64\ns_add_u32 s67, s64, s65')
    a(f's_cmp_lt_u32 s62, 16\ns_cselect_b32 s65, s65, s67\ns_cselect_b32 s{sCG}, s66, 8\ns_add_u32 s{sRB}, s63, s65\ns_lshl_b32 s{sN0}, s{sRB}, 6')
def decodeA(a):
    a(f's_cmp_ge_u32 s62, 7\ns_cselect_b32 s63, 1, 0\ns_cselect_b32 s64, 7, 0\ns_sub_u32 s62, s62, s64\ns_mul_i32 s64, s60, 7\ns_add_u32 s{sRB}, s62, s64')
    a(f's_lshl_b32 s{sCG}, s61, 1\ns_add_u32 s{sCG}, s{sCG}, s63\ns_mul_i32 s{sN0}, s{sRB}, 73\ns_mul_i32 s{sL0}, s{sCG}, 160\ns_lshr_b32 s{sL0}, s{sL0}, 7')

def loader(a,role):
    NB=5 if role=='A' else 4
    XS=NB*4096
    stride=3840 if role=='A' else 3456
    vW,vXo=2,3
    a(f'v_lshrrev_b32 v4, 3, v0\nv_and_b32 v5, 7, v0\ns_lshl_b32 s60, s{sWL}, 3\nv_add_u32 v{vW}, s60, v4\nv_mul_u32_u24 v{vW}, {stride}, v{vW}')
    a(f'v_and_b32 v6, 2, v4\ns_and_b32 s60, s{sWL}, 1\ns_lshl_b32 s60, s60, 2\nv_or_b32 v6, s60, v6\nv_xor_b32 v6, v6, v5\nv_lshl_add_u32 v{vW}, v6, 4, v{vW}')
    if role=='A': a(f's_lshl_b32 s60, s{sL0}, 7')
    else: a(f's_mul_i32 s60, s{sCG}, 384')
    a(f'v_add_u32 v{vW}, s60, v{vW}')
    a(f's_and_b32 s60, s{sWL}, 1\ns_lshr_b32 s61, s{sWL}, 1\ns_lshl_b32 s62, s60, 3\ns_add_u32 s62, s62, s{sN0}\ns_lshl_b32 s62, s62, 1\ns_add_u32 s62, s62, s61')
    a(f'v_lshl_add_u32 v{vXo}, v4, 1, s62\nv_mul_u32_u24 v{vXo}, 1280, v{vXo}\nv_lshrrev_b32 v6, 1, v4\ns_lshl_b32 s60, s60, 2\nv_or_b32 v6, s60, v6\nv_xor_b32 v6, v6, v5\nv_lshl_add_u32 v{vXo}, v6, 4, v{vXo}')
    a(f's_mul_i32 s83, s{sWL}, {6*4096}\ns_lshl_b32 s84, s{sWL}, 10\ns_add_u32 s84, s84, {LX}')
    def group(s):
        if s%2==0:
            for b in range(NB):
                a(f's_add_u32 m0, s84, {((s>>1)&1)*XS+b*4096}\ns_mov_b32 s85, {(s>>1)*128+b*32*1280}')
                a.vmem(f'buffer_load_dwordx4 v{vXo}, {sr(sX,4)}, s85 offen lds',('g',s))
        for l in range(6):
            if role=='A': S=sWa; co=(l>>1)*1280+(l&1)*128
            else: S=sWa if l<3 else sWb; co=(l%3)*128
            a(f's_add_u32 m0, s83, {l*4096+(s%4)*1024}\ns_mov_b32 s85, {s*32*stride+co}')
            a.vmem(f'buffer_load_dwordx4 v{vW}, {sr(S,4)}, s85 offen lds',('g',s))
    for s in range(3): group(s)
    a.vm.wait(('g',0)); a('s_barrier')
    for s in range(20):
        if s==19: gather_finish(a,role)
        if s+1<20: a.vm.wait(('g',s+1))
        a('s_barrier')
        if s+3<20: group(s+3)
        if s==16: gather_issue(a,role)

def gather_issue(a,role,fl=''):
    NB=5 if role=='A' else 4
    a(f'v_min_u32 v8, 47, v0\ns_mul_i32 s60, s{sWL}, 96\nv_lshl_add_u32 v8, v8, 1, s60\nv_lshrrev_b32 v9, 6, v8\nv_and_b32 v10, 63, v8')
    if role=='A':
        a(f'v_lshrrev_b32 v11, 1, v9\nv_and_b32 v9, 1, v9\nv_mad_u32_u24 v9, v11, 10, v9\nv_add_u32 v9, s{sL0}, v9')
    else:
        a(f'v_add_u32 v11, 1, v9\nv_lshrrev_b32 v11, 2, v11\nv_mad_u32_u24 v9, v11, 24, v9\ns_mul_i32 s60, s{sCG}, 3\ns_add_u32 s60, s60, 30\nv_add_u32 v9, s60, v9')
    a('v_lshlrev_b32 v9, 8, v9\nv_lshl_add_u32 v9, v10, 2, v9')
    for j in range(10):
        a(f's_mov_b32 s85, {CSP+j*CSJ}')
        a.vmem(f'buffer_load_dwordx2 {vr(16+2*j,2)}, v9, {sr(sWS,4)}, s85 offen {fl}','gc')
    a(f'v_min_u32 v12, {8*NB-1}, v0\ns_mul_i32 s60, s{sWL}, {8*NB}\nv_add_u32 v12, s60, v12')
    a(f'v_lshrrev_b32 v13, 5, v12\nv_and_b32 v14, 15, v12\nv_lshl_add_u32 v13, v13, 4, v14\nv_add_u32 v13, s{sN0}, v13\nv_bfe_u32 v14, v12, 4, 1\nv_lshl_add_u32 v13, v13, 1, v14\nv_lshlrev_b32 v13, 3, v13')
    a.vmem(f'buffer_load_dwordx2 v[36:37], v13, {sr(sST,4)}, 0 offen {fl}','gs')
def gather_finish(a,role):
    a.vm.wait(['gc','gs'])
    for j in range(1,10): a(f'v_add_f32 v16, v16, v{16+2*j}\nv_add_f32 v17, v17, v{17+2*j}')
    a(f'v_lshlrev_b32 v8, 2, v8')
    a.ds(f'ds_write_b64 v8, v[16:17] offset:{0}'.replace('offset:0',f'offset:{LCS-131072}').replace('v8,','v9,') if False else f'v_add_u32 v8, {LCS}, v8\nds_write_b64 v8, v[16:17]','w')
    a('v_xor_b32 v36, 0x80000000, v36')
    if role=='B':
        a(f'v_mul_f32 v40, v37, v37\nv_rcp_f32 v39, v40\nv_mul_f32 v38, v40, v37\nv_mul_f32 v38, {f2u(-KG*0.044715):#x}, v38\nv_mul_f32 v37, {f2u(-KG):#x}, v37')
        a(f'v_lshlrev_b32 v12, 4, v12\nv_add_u32 v12, {LST}, v12')
        a.ds('ds_write_b128 v12, v[36:39]','w')
    else:
        a(f'v_lshlrev_b32 v13, 3, v12\nv_add_u32 v13, {LST}, v13\nv_lshlrev_b32 v12, 2, v12\nv_add_u32 v12, {LM}, v12')
        a.ds('ds_write_b64 v13, v[36:37]','w')
        a.ds('ds_write_b32 v12, v36','w')
        a.ds(f'ds_write_b32 v12, v37 offset:{LR-LM}','w')
    a.lg.wait_all()

def mainloop(a,role,tiles,NB,XF,WF,ACC,vXb,xstep):
    nt=len(tiles); XS=(5 if role=='A' else 4)*4096
    xf=lambda s,j: XF+((s&1)*NB+j)*4
    wf=lambda n: WF+(n%4)*4
    def wread(n):
        s,t=divmod(n,nt); b,imm,_=tiles[t]
        return [(f'ds_read_b64_tr_b16 {vr(wf(n)+2*h,2)}, v{b} offset:{imm+(s%4)*1024+h*512}',('w',n)) for h in range(2)]
    def xread(s,j):
        return (f'ds_read_b128 {vr(xf(s,j),4)}, v{vXb+(s&1)} offset:{((s>>1)&1)*XS+j*xstep}',('x',s))
    for i in range(nt*NB*4): a(f'v_mov_b32 v{ACC+i}, 0')
    a('s_barrier')
    for j in range(NB): a.ds(*xread(0,j))
    for x in wread(0)+wread(1): a.ds(*x)
    a(f's_mov_b32 s60, 5\n.p2align 6\nL_loop{role}:')
    assert (4*nt)%4==0
    for s in range(4):
        for t in range(nt):
            n=s*nt+t
            fill=wread(n+2)
            if 1<=t<=NB: fill.append(xread(s+1,t-1))
            a.lg.wait([('w',n),('x',s)])
            for j in range(NB):
                m=ACC+(t*NB+j)*4
                A,B=vr(wf(n),4),vr(xf(s,j),4)
                if tiles[t][2]: A,B=B,A
                a(f'v_mfma_f32_16x16x32_bf16 {vr(m,4)}, {A}, {B}, {vr(m,4)}')
                if t==0 and j==0: a('s_barrier')
                elif fill: a.ds(*fill.pop(0))
            assert not fill
    a(f's_sub_u32 s60, s60, 1\ns_cmp_lg_u32 s60, 0\ns_cbranch_scc1 L_loop{role}')
    a.lg.wait_all()

def lane_parts(a):
    a('v_lshrrev_b32 v1, 4, v0\nv_and_b32 v2, 15, v0\nv_bfe_u32 v3, v0, 2, 2\nv_and_b32 v4, 3, v0')
    a('v_lshrrev_b32 v5, 1, v3\nv_and_b32 v6, 1, v1\nv_lshl_or_b32 v5, v6, 1, v5')
def xbase(a,vXb,sTB0):
    a(f'v_lshrrev_b32 v6, 1, v2\nv_xor_b32 v6, v6, v1\nv_lshlrev_b32 v6, 4, v6\nv_lshl_add_u32 v6, v2, 7, v6\ns_lshl_b32 s60, s{sTB0}, 11\ns_add_u32 s60, s60, {LX}\nv_add_u32 v{vXb}, s60, v6\nv_xor_b32 v{vXb+1}, 64, v{vXb}')
def wbase(a,dst,vo):
    a(f'v_lshrrev_b32 v6, 7, v{vo}\nv_mad_u32_u24 v6, v1, 6, v6\nv_lshlrev_b32 v6, 12, v6\nv_lshl_add_u32 v6, v3, 7, v6')
    a(f'v_bfe_u32 v7, v{vo}, 5, 2\nv_xor_b32 v7, v7, v5\nv_lshl_add_u32 v6, v7, 5, v6\nv_and_b32 v7, 31, v{vo}\nv_add_u32 v{dst}, v6, v7')

PK='v_pk_fma_f32'
def bc(lo,k,n=3):
    pass
def pk(a,op,d,srcs):
    ops=[];sel=[];selh=[]
    for r,m in srcs:
        if m is None: assert r%2==0; ops.append(vr(r,2)); sel.append(0); selh.append(1)
        else: ops.append(vr(r&~1,2)); sel.append(r&1); selh.append(r&1)
    mod=''
    if any(sel) : mod+=f' op_sel:[{",".join(map(str,sel))}]'
    if not all(selh): mod+=f' op_sel_hi:[{",".join(map(str,selh))}]'
    a(f'v_pk_{op}_f32 {vr(d,2)}, {", ".join(ops)}{mod}')
P=lambda r:(r,None); S=lambda r:(r,0)

def computeB(a,fl=''):
    ACC=64; XF=16; WF=48; vWb=8; vXb=10
    lane_parts(a)
    a(f's_lshr_b32 s86, s{sWL}, 1\ns_and_b32 s87, s{sWL}, 1\ns_lshl_b32 s61, s86, 2')
    xbase(a,vXb,61)
    for qq in range(2):
        a(f's_lshl_b32 s61, s87, 6\ns_add_u32 s61, s61, {qq*32}\nv_lshl_add_u32 v12, v4, 3, s61')
        wbase(a,vWb+qq,12)
    a(f's_lshl_b32 s61, s86, 10\ns_add_u32 s61, s61, {LST}\nv_lshl_add_u32 v12, v2, 4, s61')
    a(f's_lshl_b32 s61, s87, 7\ns_add_u32 s61, s61, {LCS}\nv_lshl_add_u32 v13, v1, 4, s61')
    a('v_lshlrev_b32 v14, 4, v0')
    a(f's_lshl_b32 s61, s{sCG}, 1\ns_add_u32 s61, s61, s87')
    sdiv(a,62,63,61,3)
    a(f's_mul_i32 s62, s62, 9\ns_add_u32 s62, s62, s63\ns_lshl_b32 s63, s{sRB}, 1\ns_add_u32 s63, s63, s86\ns_mul_i32 s63, s63, 74\ns_add_u32 s62, s62, s63\ns_add_u32 s62, s62, 20\ns_lshl_b32 s62, s62, 12\ns_add_u32 s88, s62, {ACT}')
    tiles=[(vWb+qq,(l+3*mat)*4096,False) for l in range(3) for qq in range(2) for mat in range(2)]
    mainloop(a,'B',tiles,4,XF,WF,ACC,vXb,2048)
    acc=lambda l,qq,mat,j: ACC+(((l*2+qq)*2+mat)*4+j)*4
    CS=16; CT=32; T=48
    for j in range(4): a.ds(f'ds_read_b128 {vr(CT+4*j,4)}, v12 offset:{j*256}','c')
    for l in range(3):
        for qq in range(2):
            for mat in range(2): a.ds(f'ds_read_b128 {vr(CS+(qq*2+mat)*4,4)}, v13 offset:{mat*768+l*256+qq*64}','c')
        a.lg.wait('c')
        for j in range(4):
            nm,cA,cB,cV=[CT+4*j+k for k in range(4)]
            prs=[(acc(l,qq,0,j)+2*h,acc(l,qq,1,j)+2*h,CS+qq*8+2*h,CS+qq*8+4+2*h,T+(qq*2+h)*2) for qq in range(2) for h in range(2)]
            for G,U,cg,cu,t in prs: pk(a,'fma',G,[P(cg),S(nm),P(G)])
            for G,U,cg,cu,t in prs: pk(a,'mul',t,[P(G),P(G)])
            for G,U,cg,cu,t in prs: pk(a,'fma',t,[P(t),S(cB),S(cA)])
            for G,U,cg,cu,t in prs: pk(a,'mul',t,[P(t),P(G)])
            for G,U,cg,cu,t in prs:
                a(f'v_exp_f32 v{t}, v{t}\nv_exp_f32 v{t+1}, v{t+1}')
                pk(a,'fma',U,[P(cu),S(nm),P(U)])
            for G,U,cg,cu,t in prs: pk(a,'fma',t,[P(t),S(cV),S(cV)])
            for G,U,cg,cu,t in prs:
                a(f'v_rcp_f32 v{t}, v{t}\nv_rcp_f32 v{t+1}, v{t+1}')
                pk(a,'mul',U,[P(U),P(G)])
            for G,U,cg,cu,t in prs: pk(a,'mul',U,[P(U),P(t)])
            o=acc(l,0,0,j)
            for k,(G,U,cg,cu,t) in enumerate(prs): a(f'v_cvt_pk_bf16_f32 v{o+k}, v{U}, v{U+1}')
            a.vmem(f'buffer_store_dwordx4 {vr(o,4)}, v14, {sr(sWS,4)}, s88 offen offset:{j*1024} {fl}','h')
        if l<2: a(f's_add_u32 s88, s88, {3*4096}')

def computeA(a,fl=''):
    ACC=96; XF=16; WF=56; vWb=8; vXb=12
    lane_parts(a)
    a(f's_and_b32 s86, s{sWL}, 1\ns_lshr_b32 s87, s{sWL}, 1')
    xbase(a,vXb,86)
    a(f's_mul_i32 s61, s{sCG}, 160\ns_mul_i32 s62, s87, 80\ns_add_u32 s61, s61, s62\ns_lshl_b32 s62, s{sL0}, 7\ns_sub_u32 s89, s61, s62')
    def offs(dst,vq):
        a(f'v_lshl_add_u32 v{dst}, v{vq}, 3, s89\nv_add_u32 v{dst+1}, 40, v{dst}')
        a(f'v_and_b32 v6, 1, v{vq}\nv_mul_u32_u24 v6, 40, v6\nv_add3_u32 v{dst+3}, v6, s89, 32\nv_lshrrev_b32 v6, 1, v{vq}\nv_lshl_add_u32 v{dst+2}, v6, 8, v{dst+3}')
    offs(72,4)
    for k in range(4): wbase(a,vWb+k,72+k)
    offs(72,1)
    for k in range(3): a(f'v_lshlrev_b32 v{72+k}, 1, v{72+k}\nv_add_u32 v{72+k}, {LCS}, v{72+k}')
    offs(76,3)
    for k in (0,1,3): a(f'v_lshlrev_b32 v{76+k}, 1, v{76+k}\nv_lshl_add_u32 v{76+k}, v4, 2, v{76+k}\nv_add_u32 v{76+k}, {LCS+1024}, v{76+k}')
    a(f's_lshl_b32 s61, s86, 7\ns_add_u32 s61, s61, {LST}\nv_lshl_add_u32 v75, v2, 3, s61')
    a(f's_lshl_b32 s61, s86, 6\ns_add_u32 s61, s61, {LM}\nv_lshl_add_u32 v78, v1, 4, s61')
    NEG=f2u(-3e38)
    a(f's_mov_b32 s61, {NEG:#x}')
    for r in range(4):
        a(f'v_lshlrev_b32 v6, 2, v1\nv_sub_u32 v6, v2, v6\nv_subrev_u32 v6, {r}, v6')
        a(f'v_mov_b32 v7, s61\nv_cmp_gt_u32 vcc, 8, v6\nv_cndmask_b32 v{80+r}, v7, 0, vcc'.replace(f'v_cndmask_b32 v{80+r}, v7, 0, vcc',f'v_cndmask_b32_e64 v{80+r}, v7, 0, vcc'))
        a(f'v_add_u32 v15, 16, v6\nv_cmp_gt_u32 vcc, 8, v15\nv_cndmask_b32_e64 v{84+r}, v7, 0, vcc')
        a(f'v_ashrrev_i32 v6, 31, v6')
        if r%2==0: a(f'v_and_b32 v{88+r//2}, 0xffff, v6')
        else: a(f'v_and_b32 v6, 0xffff0000, v6\nv_or_b32 v{88+r//2}, v{88+r//2}, v6')
    a('v_not_b32 v90, v88\nv_not_b32 v91, v89')
    a('v_cmp_eq_u32 vcc, 0, v1\nv_cndmask_b32_e64 v92, 0, -1, vcc\nv_cmp_eq_u32 vcc, 1, v1\nv_cndmask_b32_e64 v93, 0, -1, vcc\nv_or_b32 v94, v92, v93')
    tiles=[(vWb,0,False),(vWb+1,0,False),(vWb,8192,False),(vWb+1,8192,False),(vWb+2,0,False),(vWb,16384,True),(vWb+1,16384,True),(vWb+3,16384,True)]
    mainloop(a,'A',tiles,5,XF,WF,ACC,vXb,4096)
    acc=lambda t,b: ACC+(t*5+b)*4
    MR=16
    CS=28
    CV=48
    for b in range(5): a.ds(f'ds_read_b64 {vr(MR+2*b,2)}, v75 offset:{b*256}','c')
    for t,(r,o) in enumerate([(72,0),(73,0),(72,512),(73,512),(74,0)]): a.ds(f'ds_read_b128 {vr(CS+4*t,4)}, v{r} offset:{o}','c')
    for k,r in enumerate((76,77,79)): a.ds(f'ds_read_b32 v{CV+k}, v{r}','c')
    a.lg.wait('c')
    VM=52
    def vmread(b):
        a.ds(f'ds_read_b128 {vr(VM+(b&1)*8,4)}, v78 offset:{b*128}',('vm',b))
        a.ds(f'ds_read_b128 {vr(VM+(b&1)*8+4,4)}, v78 offset:{LR-LM+b*128}',('vm',b))
    vmread(0)
    for b in range(5):
        if b<4: vmread(b+1)
        nm,r=MR+2*b,MR+2*b+1
        rE=68; e=70
        a(f'v_bfi_b32 v{rE}, v94, 1.0, v{r}')
        for t in range(5):
            for h in range(2): pk(a,'fma',acc(t,b)+2*h,[P(CS+4*t+2*h),S(nm),P(acc(t,b)+2*h)])
        for t in (4,2,3):
            for h in range(2): pk(a,'mul',acc(t,b)+2*h,[P(acc(t,b)+2*h),S(rE if t==4 else r)])
        E=acc(4,b)
        for t in range(4):
            for h in range(2): a(f'v_cvt_pk_bf16_f32 v{acc(t,b)+h}, v{acc(t,b)+2*h}, v{acc(t,b)+2*h+1}')
        for h in range(2):
            a(f'v_cvt_pk_bf16_f32 v{e+h}, v{E+2*h}, v{E+2*h+1}\nv_cvt_pk_bf16_f32 v{acc(2,b)+2+h}, v{E+2*h}, v{E+2*h+1}')
        a.lg.wait(('vm',b)); m4=VM+(b&1)*8; r4=m4+4
        for k in range(3):
            for h in range(2): pk(a,'fma',acc(5+k,b)+2*h,[P(m4+2*h),S(CV+k),P(acc(5+k,b)+2*h)])
        for h in range(2): a(f'v_permlane32_swap_b32 v{e+h}, v{acc(2,b)+2+h}')
        for k in range(3):
            for h in range(2): pk(a,'mul',acc(5+k,b)+2*h,[P(acc(5+k,b)+2*h),P(r4+2*h)])
        for h in range(2):
            a(f'v_and_b32 v{acc(0,b)+2+h}, v92, v{e+h}\nv_and_b32 v{acc(1,b)+2+h}, v93, v{e+h}\nv_mov_b32 v{acc(3,b)+2+h}, v{acc(2,b)+2+h}')
        for k in range(3):
            base=acc(5+k,0)
            for h in ((1,0) if b==0 else (0,1)): a(f'v_cvt_pk_bf16_f32 v{base+2*b+2+h}, v{acc(5+k,b)+2*h}, v{acc(5+k,b)+2*h+1}')
            if b==0: a(f'v_mov_b32 v{base}, 0\nv_mov_b32 v{base+1}, 0')
        a(f'v_mul_f32 v{nm}, {f2u(20**-0.5*math.log2(math.e)):#x}, v{r}')
    a(f's_lshl_b32 s61, s{sCG}, 1\ns_add_u32 s61, s61, s87\ns_lshl_b32 s88, s61, 12\ns_add_u32 s88, s88, {ACT}')
    a(f's_lshr_b32 s62, s61, 2\ns_add_u32 s62, s62, 16\ns_lshl_b32 s62, s62, 12\ns_and_b32 s61, s61, 3\ns_lshl_b32 s61, s61, 8\ns_add_u32 s62, s62, s61\ns_add_u32 s89, s62, {ACT}')
    a(f's_cmp_eq_u32 s{sRB}, 0\ns_cselect_b32 s61, 0, 7\ns_add_u32 s61, s61, s{sN0}\ns_sub_u32 s62, 1024, s61\ns_lshl_b32 s63, s86, 10\ns_mov_b32 s64, {74*4096}\ns_mov_b32 s65, {OOB}')
    for b in range(5):
        a(f'v_add_u32 v6, s{sN0}, v2\nv_add_u32 v6, {16*b}, v6')
        a(f'v_lshrrev_b32 v7, 5, v6\nv_mul_lo_u32 v7, v7, s64\nv_bfe_u32 v14, v6, 4, 1\nv_lshl_add_u32 v7, v14, 11, v7\nv_and_b32 v14, 15, v6\nv_lshl_add_u32 v7, v14, 4, v7\nv_lshl_add_u32 v7, v1, 8, v7\nv_add_u32 v7, s63, v7')
        a(f'v_subrev_u32 v6, s61, v6\nv_cmp_gt_u32 vcc, s62, v6\nv_mov_b32 v14, s65\nv_cndmask_b32 v{8+b}, v14, v7, vcc')
    a(f'v_mul_i32_i24 v13, -248, v1\nv_mov_b32 v14, s65\nv_bfi_b32 v13, v94, v13, v14')
    ONE=72
    for k in range(4): a(f'v_mov_b32 v{ONE+k}, 0x3f803f80')
    for b in range(5):
        c=MR+2*b
        SC=[28,44]; SP=[32,48]; PB=[36,52]; MX=[40,56]
        OM=[60,64]; OE=[acc(4,0),acc(4,1)]; SM=[acc(4,2),acc(4,3)]
        for h in range(2):
            a(f'v_mfma_f32_16x16x32_bf16 {vr(SC[h],4)}, {vr(acc(2+h,b),4)}, {vr(acc(h,b),4)}, v[80:83]')
            if b: a(f'v_mfma_f32_16x16x32_bf16 {vr(SP[h],4)}, {vr(acc(2+h,b-1),4)}, {vr(acc(h,b),4)}, v[84:87]')
        H=range(2)
        if b:
            for h in H:
                for r in range(4): a(f'v_max_f32 v{SC[h]+r}, v{SC[h]+r}, v{SP[h]+r}')
        for h in H: a(f'v_max3_f32 v{MX[h]}, v{SC[h]}, v{SC[h]+1}, v{SC[h]+2}')
        for h in H: a(f'v_max_f32 v{MX[h]}, v{MX[h]}, v{SC[h]+3}')
        for sw in ('32','16'):
            for h in H: a(f'v_mov_b32 v{MX[h]+1}, v{MX[h]}')
            for h in H: a(f'v_permlane{sw}_swap_b32 v{MX[h]}, v{MX[h]+1}')
            for h in H: a(f'v_max_f32 v{MX[h]}, v{MX[h]}, v{MX[h]+1}')
        for h in H: a(f'v_mul_f32_e64 v{MX[h]}, -v{MX[h]}, v{c}')
        for h in H:
            for k in range(2): pk(a,'fma',SC[h]+2*k,[P(SC[h]+2*k),S(c),S(MX[h])])
        for h in H:
            for r in range(4): a(f'v_exp_f32 v{SC[h]+r}, v{SC[h]+r}')
        for h in H:
            for k in range(2): a(f'v_cvt_pk_bf16_f32 v{MX[h]+2+k}, v{SC[h]+2*k}, v{SC[h]+2*k+1}')
        for h in H:
            for k in range(4): a(f'v_and_b32 v{PB[h]+k}, v{88+k}, v{MX[h]+2+(k&1)}')
        for h in H:
            a(f'v_mfma_f32_16x16x32_bf16 {vr(SM[h],4)}, {vr(ONE,4)}, {vr(PB[h],4)}, 0')
            a(f'v_mfma_f32_16x16x32_bf16 {vr(OM[h],4)}, {vr(acc(5+h,0)+2*b,4)}, {vr(PB[h],4)}, 0')
            a(f'v_mfma_f32_16x16x32_bf16 {vr(OE[h],4)}, {vr(acc(7,0)+2*b,4)}, {vr(PB[h],4)}, 0')
        a(f'v_add_u32 v14, v13, v{8+b}')
        for h in H: a(f'v_rcp_f32 v{SM[h]}, v{SM[h]}')
        for h in H:
            for k in range(2): pk(a,'mul',OM[h]+2*k,[P(OM[h]+2*k),S(SM[h])])
            for k in range(2): pk(a,'mul',OE[h]+2*k,[P(OE[h]+2*k),S(SM[h])])
        O=acc(0,b)
        for h in H:
            for k in range(2): a(f'v_cvt_pk_bf16_f32 v{O+2*h+k}, v{OM[h]+2*k}, v{OM[h]+2*k+1}')
            for k in range(2): a(f'v_cvt_pk_bf16_f32 v{OE[h]+k}, v{OE[h]+2*k}, v{OE[h]+2*k+1}')
        a.vmem(f'buffer_store_dwordx4 {vr(O,4)}, v{8+b}, {sr(sWS,4)}, s88 offen {fl}','o')
        O2=acc(1,b)
        for k in range(2): a(f'v_bfi_b32 v{O2+k}, v92, v{OE[0]+k}, v{OE[1]+k}')
        a.vmem(f'buffer_store_dwordx2 {vr(O2,2)}, v14, {sr(sWS,4)}, s89 offen {fl}','o')

def k1():
    a=Asm(); n='ph1_kernel'; head(a,n)
    decode1(a)
    for role in 'BA':
        if role=='A': a('L_roleA:')
        (decodeA if role=='A' else decodeB)(a)
        a('s_waitcnt lgkmcnt(0)')
        srd(a,sX,pX,XB); srd(a,sWS,pWS,WSZ); srd(a,sST,pWS,16384)
        if role=='A': srd(a,sWa,pQKV,640*3840)
        else: srd(a,sWa,pG,640*3456); srd(a,sWb,pU,640*3456)
        a(f's_cmp_ge_u32 s{sW}, 4\ns_cbranch_scc1 L_load{role}')
        a.vm.reset(); a.lg.reset()
        (computeA if role=='A' else computeB)(a)
        a('s_endpgm')
        a(f'L_load{role}:')
        a.vm.reset(); a.lg.reset()
        loader(a,role)
        a('s_endpgm')
    a(f'{n}_end:\ns_endpgm')
    return a.text()

def ph2_steps(a,n,lab,fl=''):
    ACC=176; FB=16; ND=4
    def issue(k):
        b=FB+(k%ND)*36
        for j in range(4): a.vmem(f'buffer_load_dwordx4 {vr(b+4*j,4)}, v8, {sr(sWS,4)}, s90 offen offset:{j*1024} {fl}',k)
        for t in range(5): a.vmem(f'buffer_load_dwordx4 {vr(b+16+4*t,4)}, v{8 if t<4 else 9}, {sr(sWS,4)}, s91 offen offset:{(t%4)*1024} {fl}',k)
        a('s_add_u32 s90, s90, 4096\ns_add_u32 s91, s91, 5120')
    for k in range(ND-1): issue(k)
    for k in range(n):
        if k+ND-1<n: issue(k+ND-1)
        a.vm.wait(k); b=FB+(k%ND)*36
        for t in range(5):
            for j in range(4):
                m=ACC+(t*4+j)*4
                a(f'v_mfma_f32_16x16x32_bf16 {vr(m,4)}, {vr(b+16+4*t,4)}, {vr(b+4*j,4)}, {vr(m,4) if k else 0}')
def ph2_final(a):
    ACC=176
    a(f'v_lshrrev_b32 v1, 4, v0\nv_and_b32 v2, 15, v0\nv_bfe_u32 v3, v0, 1, 2\nv_xor_b32 v3, v3, v1\nv_mul_u32_u24 v4, 320, v2\nv_lshl_add_u32 v4, v3, 4, v4\ns_mul_i32 s60, s{sW}, 20480\nv_add_u32 v4, s60, v4')
    for t in range(5):
        for j in range(4): a.ds(f'ds_write_b128 v4, {vr(ACC+(t*4+j)*4,4)} offset:{j*5120+t*64}','d')
    def item_addr(p):
        b=10+3*p
        a(f's_lshl_b32 s60, s{sW}, 6\ns_add_u32 s60, s60, {512*p}\nv_add_u32 v5, s60, v0\nv_mul_u32_u24 v6, 6554, v5\nv_lshrrev_b32 v6, 16, v6\nv_mul_u32_u24 v7, 10, v6\nv_sub_u32 v7, v5, v7')
        a(f'v_bfe_u32 v5, v6, 1, 2\nv_lshlrev_b32 v{b}, 1, v7\nv_xor_b32 v{b}, v{b}, v5\nv_lshlrev_b32 v{b}, 4, v{b}\nv_mul_u32_u24 v5, 320, v6\nv_add_u32 v{b}, v{b}, v5\nv_xor_b32 v{b+1}, 16, v{b}')
        a(f'v_and_b32 v5, 15, v6\nv_lshlrev_b32 v5, 1, v5\nv_bfe_u32 v{b+2}, v6, 4, 1\nv_add_u32 v5, v5, v{b+2}\nv_and_b32 v6, 32, v6\nv_add_u32 v5, v5, v6\nv_mul_u32_u24 v5, 1280, v5\nv_lshl_add_u32 v{b+2}, v7, 4, v5')
        a.vmem(f'buffer_load_dwordx4 {vr(16+4*p,4)}, v{b+2}, {sr(sX,4)}, s92 offen',('x',p))
    def item(p):
        b=10+3*p; R=32
        order=[4,5,0,1,2,3,6,7]
        a(f'v_add_u32 v5, 61440, v{b}\nv_add_u32 v6, 61440, v{b+1}\nv_add_u32 v7, 122880, v{b}\nv_add_u32 v9, 122880, v{b+1}')
        for k,w in enumerate(order):
            for e in range(2):
                base=[(b,b+1),(5,6),(7,9)][w//3][e]
                a.ds(f'ds_read_b128 {vr(R+k*8+e*4,4)}, v{base} offset:{(w%3)*20480}',('r',k))
        a.lg.wait(('r',1))
        for h in range(4): pk(a,'add',R+2*h,[P(R+2*h),P(R+8+2*h)])
        Y=R+16
        for k in range(3,8):
            a.lg.wait(('r',k))
            for h in range(4): pk(a,'add',Y+2*h,[P(Y+2*h),P(R+k*8+2*h)])
        T=R+24; X=R+32
        for h in range(8): a(f'v_mul_f32 v{T+h}, {f2u(-math.log2(math.e)):#x}, v{Y+h}')
        for h in range(8): a(f'v_exp_f32 v{T+h}, v{T+h}')
        for h in range(4): pk(a,'mul',R+2*h,[P(R+2*h),P(Y+2*h)])
        for h in range(8): a(f'v_add_f32 v{T+h}, 1.0, v{T+h}')
        for h in range(8): a(f'v_rcp_f32 v{T+h}, v{T+h}')
        a.vm.wait(('x',p))
        for h in range(4): a(f'v_lshlrev_b32 v{X+2*h}, 16, v{16+4*p+h}\nv_and_b32 v{X+2*h+1}, 0xffff0000, v{16+4*p+h}')
        for h in range(4): pk(a,'fma',X+2*h,[P(R+2*h),P(T+2*h),P(X+2*h)])
        for h in range(4): a(f'v_cvt_pk_bf16_f32 v{24+4*p+h}, v{X+2*h}, v{X+2*h+1}')
        a.vmem(f'buffer_store_dwordx4 {vr(24+4*p,4)}, v{b+2}, {sr(sOUT,4)}, s92 offen','o')
    item_addr(0)
    a.lg.wait_all(); a('s_barrier')
    item(0)
    a(f's_cmp_ge_u32 s{sW}, 2\ns_cbranch_scc1 ph2_kernel_end')
    item_addr(1); item(1)
def k2():
    a=Asm(); n='ph2_kernel'; head(a,n)
    a('s_and_b32 s60, s2, 7\ns_lshr_b32 s61, s2, 6\ns_lshl_b32 s60, s60, 2\ns_add_u32 s60, s60, s61\ns_bfe_u32 s61, s2, 0x30003')
    a(f's_sub_u32 s62, s{sW}, 2\ns_cmp_lt_u32 s{sW}, 4\ns_cselect_b32 s62, s{sW}, s62\ns_mul_i32 s62, s62, 9\ns_add_u32 s62, s62, 20')
    a(f's_sub_u32 s63, s{sW}, 4\ns_mul_i32 s64, s63, 10\ns_cmp_lt_u32 s63, 2\ns_cselect_b32 s62, s64, s62')
    a(f's_mul_i32 s64, s60, 74\ns_add_u32 s64, s64, s62\ns_lshl_b32 s64, s64, 12\ns_add_u32 s90, s64, {ACT}')
    a(f's_mul_i32 s64, s61, 74\ns_add_u32 s64, s64, s62\ns_mul_i32 s64, s64, 5120\ns_add_u32 s91, s64, {W2P}')
    a(f's_mul_i32 s92, s60, {64*1280}\ns_mul_i32 s64, s61, 160\ns_add_u32 s92, s92, s64')
    a('v_lshlrev_b32 v8, 4, v0\nv_add_u32 v9, 4096, v8')
    a('s_waitcnt lgkmcnt(0)')
    srd(a,sX,pX,XB); srd(a,sWS,pWS,WSZ); srd(a,sOUT,pOUT,XB)
    a('s_cmp_lt_u32 s63, 2\ns_cbranch_scc1 L_s')
    ph2_steps(a,9,'y'); a('s_branch L_fin\nL_s:')
    a.vm.reset(); ph2_steps(a,10,'s'); a('L_fin:\ns_nop 7')
    a.vm.reset(); ph2_final(a)
    a(f'{n}_end:\ns_endpgm')
    return a.text()

def build(path):
    hdr=open(f'cdna_kernels/{NAME}.s.ref').read().split('; Override')[0]
    t=hdr
    t+='; @launch kernel=prep_kernel grid=(256,1,1) block=(256,1,1) lds=16384\n'
    t+=f'; @launch kernel=ph1_kernel grid=(256,1,1) block=(512,1,1) lds={LEND}\n'
    t+='; @launch kernel=ph2_kernel grid=(256,1,1) block=(512,1,1) lds=163840\n'
    t+='.amdgcn_target "amdgcn-amd-amdhsa--gfx950"\n.text\n'+k0()+k1()+k2()
    t+='.section .rodata,"a"\n'
    for n in ('prep_kernel','ph1_kernel','ph2_kernel'): t+='.p2align 6\n'+desc(n)+'\n'
    open(path,'w').write(t)
if __name__=='__main__':
    build(sys.argv[1] if len(sys.argv)>1 else f'cdna_kernels/{NAME}.s')
```
